```python
import torch

def _softmax(x, axis=-1):
    return torch.softmax(x, dim=axis)
def _gelu(x):
    return torch.nn.functional.gelu(x, approximate="tanh")
def _silu(x):
    return torch.nn.functional.silu(x)
def _sigmoid(x):
    return torch.sigmoid(x)
def _layernorm(x, axis=-1, eps=1e-5):
    m = x.mean(dim=axis, keepdim=True)
    v = x.var(dim=axis, keepdim=True, unbiased=False)
    return (x - m) / torch.sqrt(v + eps)
def _scatter_add(tgt, idx, src, axis=0):
    return tgt.clone().index_add_(axis, idx, src)
def _segment_sum(src, seg, n):
    out = torch.zeros((n,) + src.shape[1:], dtype=src.dtype)
    return out.index_add_(0, seg, src)
def _pad(x, pw):
    flat = tuple(v for pair in reversed(pw) for v in pair)
    return torch.nn.functional.pad(x, flat)

kernel_name = 'standalone__gqa_softmax__near_ridge'

def setup_inputs():

    _w = (lambda a: (lambda t: t.to(torch.bfloat16) if t.is_floating_point() else t)(torch.as_tensor(a)))
    B, Hq, Hkv, Sq, Sk, D = 8, 16, 8, 144, 1024, 256
    return {
        "q": _w((lambda *s: torch.randn(*s, dtype=torch.bfloat16) * 0.8)(B, Hq, Sq, D)),
        "k": _w((lambda *s: torch.randn(*s, dtype=torch.bfloat16) * 0.8)(B, Hkv, Sk, D)),
        "v": _w((lambda *s: torch.randn(*s, dtype=torch.bfloat16) * 0.05)(B, Hkv, Sk, D)),
    }

def reference(q, k, v):
    B, Hq, Sq, D = q.shape
    Hkv = k.shape[1]
    rep = Hq // Hkv
    k = (lambda x, n, axis: torch.repeat_interleave(x, n, dim=axis))(k, rep, axis=1)
    v = (lambda x, n, axis: torch.repeat_interleave(x, n, dim=axis))(v, rep, axis=1)
    scale = D ** -0.5
    scores = torch.einsum("bhqd,bhkd->bhqk", q, k) * scale
    p = _softmax(scores, axis=-1)
    return torch.einsum("bhqk,bhkd->bhqd", p, v)
```

```python
import re

_REG_RE = re.compile(r'\b([vas])\[(\d+):(\d+)\]|\b([vas])(\d+)\b|\b(vcc|exec|m0|exec_lo|exec_hi|vcc_lo|vcc_hi)\b')


def regs_of(opnd):
    out = []
    for m in _REG_RE.finditer(opnd):
        if m.group(1):
            out += [f"{m.group(1)}{i}" for i in range(int(m.group(2)), int(m.group(3)) + 1)]
        elif m.group(4):
            out.append(f"{m.group(4)}{m.group(5)}")
        else:
            n = m.group(6)
            out.append('exec' if n.startswith('exec') else 'vcc' if n.startswith('vcc') else n)
    return out


NO_DEST = ('ds_write', 'ds_max_f32', 'ds_add_f32', 'buffer_store', 'global_store', 's_cmp', 's_waitcnt', 's_barrier',
           's_branch', 's_cbranch', 's_nop', 's_setprio', 's_endpgm', 's_sleep')
TRANS = ('v_exp_f32', 'v_rcp_f32', 'v_log_f32', 'v_rsq_f32', 'v_sqrt_f32')


class Ins:
    __slots__ = ('text', 'kind', 'rd', 'wr', 'passes', 'srcc', 'states')


class Prog:
    def __init__(self):
        self.lines = []
        self.hist = []
        self.lgkm = []
        self.vm = []
        self.ninstr = 0
        self.stats = {}

    def raw(self, s):
        self.lines.append(s)

    def label(self, name):
        self.lines.append(f"{name}:")

    def comment(self, s):
        self.lines.append(f"  ; {s}")

    def _parse(self, text):
        ins = Ins()
        ins.text = text
        mn, _, rest = text.partition(' ')
        ops = [o.strip() for o in rest.split(',')] if rest else []
        ins.passes = 0
        ins.srcc = set()
        ins.states = 1
        if mn.startswith('v_mfma'):
            ins.kind = 'mfma'
            ins.passes = 8 if '32x32x16' in mn else 4
            ins.wr = set(regs_of(ops[0]))
            ins.rd = set(regs_of(ops[1])) | set(regs_of(ops[2])) | set(regs_of(ops[3]))
            ins.srcc = set(regs_of(ops[3]))
            return ins
        if mn.startswith('ds_'):
            ins.kind = 'ldsw' if mn.startswith(NO_DEST) else 'ldsr'
        elif mn.startswith('buffer_') or mn.startswith('global_'):
            ins.kind = 'vmem'
        elif mn.startswith('s_load') or mn.startswith('s_mem'):
            ins.kind = 'smem'
        elif mn.startswith('s_'):
            ins.kind = 'salu'
        elif mn.startswith(TRANS):
            ins.kind = 'trans'
        elif mn.startswith('v_'):
            ins.kind = 'valu'
        else:
            raise ValueError(text)
        nodest = mn.startswith(NO_DEST) or (mn.startswith('buffer_load') and rest.rstrip().endswith('lds'))
        if nodest:
            ins.wr = set()
            ins.rd = set(r for o in ops for r in regs_of(o))
        else:
            ins.wr = set(regs_of(ops[0]))
            ins.rd = set(r for o in ops[1:] for r in regs_of(o))
        if mn.startswith('v_permlane'):
            ins.wr |= set(regs_of(ops[1]))
            ins.rd |= set(regs_of(ops[0]))
        if mn.startswith('v_fmac') or mn.startswith('v_pk_fmac'):
            ins.rd |= ins.wr
        if mn.startswith('buffer_load') and rest.rstrip().endswith('lds'):
            ins.rd.add('m0')
        if mn == 's_nop':
            ins.states = int(ops[0]) + 1
        if mn.startswith('s_and_saveexec') or mn.startswith('s_or_saveexec'):
            ins.wr.add('exec')
        return ins

    def _needed_states(self, ins):
        need = 0
        dist = 0
        isvalu = ins.kind in ('valu', 'trans')
        for h in reversed(self.hist):
            req = 0
            hv = h.kind in ('valu', 'trans')
            if hv and ins.kind == 'mfma' and (h.wr & ins.rd):
                req = max(req, 2)
            if h.kind == 'mfma':
                n = {4: 8, 8: 12}[h.passes]
                if isvalu and (h.wr & (ins.rd | ins.wr)):
                    req = max(req, n)
                if ins.kind in ('ldsw', 'ldsr', 'vmem') and (h.wr & (ins.rd | ins.wr)):
                    req = max(req, n)
                if ins.kind == 'mfma':
                    ab = ins.rd - ins.srcc
                    if h.wr & ab:
                        req = max(req, n)
                    if (h.wr & ins.srcc) and not (h.wr == ins.srcc and h.passes == ins.passes):
                        req = max(req, n - 2)
                    elif (h.wr & ins.wr) and not (h.wr == ins.wr and h.passes == ins.passes):
                        req = max(req, n)
                if isvalu and (h.srcc & ins.wr):
                    req = max(req, {4: 3, 8: 7}[h.passes])
            if h.kind == 'trans' and ins.kind == 'valu' and (h.wr & ins.rd):
                req = max(req, 1)
            if h.kind == 'trans' and ins.kind in ('ldsw', 'vmem', 'mfma') and (h.wr & ins.rd):
                req = max(req, 2 if ins.kind == 'mfma' else 1)
            if hv:
                sw = {r for r in h.wr if r[0] == 's' or r == 'vcc'}
                if sw:
                    if ins.kind == 'vmem' and (sw & ins.rd):
                        req = max(req, 5)
                    if isvalu and (sw & ins.rd):
                        req = max(req, 4 if ins.text.startswith(('v_readlane', 'v_writelane')) else 2)
                    if ins.kind == 'salu' and (sw & ins.rd):
                        req = max(req, 4)
                if ins.text.startswith(('v_readfirstlane', 'v_readlane')) and (h.wr & ins.rd):
                    req = max(req, 1)
                if ins.text.startswith('v_permlane') and (h.wr & ins.rd):
                    req = max(req, 2)
                if 'exec' in h.wr and ins.kind == 'mfma':
                    req = max(req, 4)
            if h.kind == 'salu' and 'm0' in h.wr and 'm0' in ins.rd and ins.kind == 'vmem':
                req = max(req, 1)
            if h.kind == 'vmem' and h.text.startswith(('buffer_store_dwordx4', 'global_store_dwordx4', 'buffer_store_dwordx3')) \
                    and (h.rd & ins.wr):
                req = max(req, 2)
            if req > dist:
                need = max(need, req - dist)
            dist += h.states
            if dist > 24:
                break
        return need

    def _push(self, ins):
        self.lines.append("  " + ins.text)
        self.hist.append(ins)
        if len(self.hist) > 40:
            self.hist.pop(0)
        self.ninstr += 1
        self.stats[ins.kind] = self.stats.get(ins.kind, 0) + 1

    def _wait(self, vm=None, lgkm=None):
        parts = []
        if vm is not None and vm < len(self.vm):
            parts.append(f"vmcnt({vm})")
            self.vm = self.vm[len(self.vm) - vm:] if vm else []
        if lgkm is not None and lgkm < len(self.lgkm):
            parts.append(f"lgkmcnt({lgkm})")
            self.lgkm = self.lgkm[len(self.lgkm) - lgkm:] if lgkm else []
        if parts:
            self._push(self._parse("s_waitcnt " + " ".join(parts)))
            self.stats['wait'] = self.stats.get('wait', 0) + 1

    def wait(self, vm=None, lgkm=None):
        self._wait(vm, lgkm)

    def wait_raw(self, text):
        self._push(self._parse("s_waitcnt " + text))

    def wait_vm_tag(self, tag):
        idx = max((i for i, (d, t) in enumerate(self.vm) if t == tag), default=None)
        if idx is not None:
            self._wait(vm=len(self.vm) - 1 - idx)

    def I(self, text, tag=None, need_vm=None, war_lds=None):
        ins = self._parse(text)
        touched = ins.rd | ins.wr
        lg = None
        for i, (d, t) in enumerate(self.lgkm):
            if (d & touched) or (war_lds is not None and t == war_lds):
                lg = len(self.lgkm) - 1 - i
        vm = None
        for i, (d, t) in enumerate(self.vm):
            if (d & touched) or (need_vm is not None and t == need_vm):
                vm = len(self.vm) - 1 - i
        if ins.kind in ('ldsr', 'ldsw') and len(self.lgkm) >= 15:
            lg = min(lg, 13) if lg is not None else 13
        if ins.kind == 'vmem' and len(self.vm) >= 63:
            vm = min(vm, 61) if vm is not None else 61
        self._wait(vm, lg)
        n = self._needed_states(ins)
        while n > 0:
            k = min(n, 16)
            self._push(self._parse(f"s_nop {k - 1}"))
            self.stats['nop'] = self.stats.get('nop', 0) + k
            n -= k
        self._push(ins)
        if ins.kind in ('ldsr', 'ldsw'):
            self.lgkm.append((set(ins.wr), tag))
        elif ins.kind == 'vmem':
            self.vm.append((set(ins.wr), tag))
        return ins

    def drain(self):
        self._wait(0, 0)

    def nops(self, n):
        while n > 0:
            k = min(n, 16)
            self._push(self._parse(f"s_nop {k - 1}"))
            n -= k

    def text(self):
        return "\n".join(self.lines) + "\n"
```

```python
import sys, math, argparse
from asmlib import Prog

KNAME = "standalone__gqa_softmax__near_ridge_kernel"

PBUF = 20480
P2OFF = 16384
STAT = 40960
RING0 = 41984
LDS_TOTAL = 163840

vKd = [10, 11, 12, 13]
vVd = [14, 15, 16, 17]
vKr = [18, 19, 20, 21]
vVr = [22, 23]
vPw, vP2w, vPr, vP2r, vSt, vSt2 = 24, 25, 26, 27, 28, 29
vMC = [30, 31, 32]
vL = [33, 34, 35]
vOs = [36, 40]
vPK = [44, 48, 52]
SB = [dict(T0=64, T1=80, T2=96), dict(T0=100, T1=116, T2=132)]
KF0, NK = 136, 6
PV0, NPV = 160, 3
vTMP = 220
aQ = [0, 64, 128]
aO = {(0, 0): 192, (0, 1): 208, (1, 0): 224, (1, 1): 240}
sK, sV, sQ, sO = "s[12:15]", "s[16:19]", "s[20:23]", "s[24:27]"
sWAVE, sJ, sRING, sC, sOFF, sMODE = "s28", "s29", "s30", "s31", "s32", "s33"

CSCALE = 0.0625 * 1.4426950408889634


def f32hex(x):
    import struct
    return "0x%08x" % struct.unpack("<I", struct.pack("<f", x))[0]


def vr(b, n):
    return f"v[{b}:{b + n - 1}]"


def ar(b, n):
    return f"a[{b}:{b + n - 1}]"


def group_seq():
    seq = [('K', 0), ('K', 1)]
    for i in range(1, 7):
        seq += [('K', i + 1), ('V', i - 1)]
    seq += [('V', 6), ('V', 7)]
    out = []
    for kind, t in seq:
        for x in range(4):
            out.append((kind, t, x))
    return out


GSEQ = group_seq()
GIDX = {g: n for n, g in enumerate(GSEQ)}


class Step:
    pass


def gen_role(P, role, G, cfg):
    L = lambda s: f"{s}_{role}"
    LA = cfg['lookahead']

    def dma_ops(n):
        kind, t, x = GSEQ[n]
        slot = n % G
        ops = []
        soff = t * 4096 + (x * 128 if kind == 'K' else x * 131072)
        ops.append(('salu', f"s_add_u32 m0, {sRING}, {slot * 4096}", None))
        ops.append(('salu', f"s_mov_b32 {sOFF}, {soff}", None))
        for b in range(4):
            vd = (vKd if kind == 'K' else vVd)[b]
            srd = sK if kind == 'K' else sV
            ops.append(('dma', f"buffer_load_dwordx4 v{vd}, {srd}, {sOFF} offen offset:{b * 1024} lds", n))
        return ops

    def emit_dma(op):
        k, text, n = op
        if k == 'salu':
            P.I(text)
        else:
            P.I(text, tag=('g', n), war_lds=('g', n - G))

    steps = []
    qk_cnt = [0]
    pv_cnt = [0]

    def qk_steps(t, it):
        S = SB[t % 2]
        for s in range(16):
            st = Step()
            st.kind = 'qk'
            st.it = it
            st.idx = qk_cnt[0]
            qk_cnt[0] += 1
            kf = KF0 + 4 * (st.idx % NK)
            n = GIDX[('K', t, s >> 2)]
            st.reads = [(f"ds_read_b128 {vr(kf, 4)}, v{vKr[s & 3]} offset:{(n % G) * 4096}", ('g', n), ('g', n))]
            c = lambda T, w: '0' if s == 0 else vr(S[T], w)
            st.mf = [
                (f"v_mfma_f32_32x32x16_bf16 {vr(S['T0'], 16)}, {vr(kf, 4)}, {ar(aQ[0] + 4 * s, 4)}, {c('T0', 16)}", 32),
                (f"v_mfma_f32_32x32x16_bf16 {vr(S['T1'], 16)}, {vr(kf, 4)}, {ar(aQ[1] + 4 * s, 4)}, {c('T1', 16)}", 32),
                (f"v_mfma_f32_16x16x32_bf16 {vr(S['T2'], 4)}, {vr(kf, 4)}, {ar(aQ[2] + 4 * s, 4)}, {c('T2', 4)}", 16),
            ]
            st.free = n if (s & 3) == 3 else None
            st.needbar = False
            steps.append(st)

    def pv_steps(t, it):
        pb = (t % 2) * PBUF
        for w2 in range(4):
            for s2 in range(2):
                st = Step()
                st.kind = 'pv'
                st.it = it
                st.idx = pv_cnt[0]
                pv_cnt[0] += 1
                fb = PV0 + 20 * (st.idx % NPV)
                n = GIDX[('V', t, w2)]
                st.reads = []
                st.reads.append((f"ds_read_b128 {vr(fb + 8, 4)}, v{vPr} offset:{pb + w2 * 4096 + s2 * 2048}", None, None))
                for h in range(2):
                    st.reads.append((f"ds_read_b64_tr_b16 {vr(fb + 2 * h, 2)}, v{vVr[0]} offset:{(n % G) * 4096 + (2 * s2 + h) * 1024}",
                                     ('g', n), ('g', n)))
                st.reads.append((f"ds_read_b128 {vr(fb + 12, 4)}, v{vPr} offset:{pb + w2 * 4096 + s2 * 2048 + 1024}", None, None))
                st.reads.append((f"ds_read_b128 {vr(fb + 16, 4)}, v{vP2r} offset:{pb + (2 * w2 + s2) * 512}", None, None))
                for h in range(2):
                    st.reads.append((f"ds_read_b64_tr_b16 {vr(fb + 4 + 2 * h, 2)}, v{vVr[1]} offset:{(n % G) * 4096 + (2 * s2 + h) * 1024}",
                                     ('g', n), ('g', n)))
                first = (t == 0 and w2 == 0 and s2 == 0)
                st.mf = []
                for dt in range(2):
                    for T in range(2):
                        acc = ar(aO[(T, dt)], 16)
                        st.mf.append((f"v_mfma_f32_32x32x16_bf16 {acc}, {vr(fb + 4 * dt, 4)}, {vr(fb + 8 + 4 * T, 4)}, {'0' if first else acc}", 32))
                    acc = vr(vOs[dt], 4)
                    st.mf.append((f"v_mfma_f32_16x16x32_bf16 {acc}, {vr(fb + 4 * dt, 4)}, {vr(fb + 16, 4)}, {'0' if first else acc}", 16))
                st.free = n if s2 == 1 else None
                st.needbar = True
                steps.append(st)

    qk_steps(0, -1)
    for i in range(0, 9):
        if i + 1 <= 7:
            qk_steps(i + 1, i)
        if i - 1 >= 0:
            pv_steps(i - 1, i)
    tnow = 0
    for st in steps:
        st.t0 = tnow
        tnow += sum(c for _, c in st.mf)

    pk_cnt = [0]

    def softmax_ops(t):
        S = SB[t % 2]
        pb = (t % 2) * PBUF
        ops = []
        first = (t == 0)
        for T, s2 in ((0, 0), (1, 0), (0, 1), (1, 1), (2, 0)):
            nreg = 8 if T < 2 else 4
            base = S[f'T{T}'] + 8 * s2
            pk = vPK[pk_cnt[0] % len(vPK)]
            pk_cnt[0] += 1
            for r in range(nreg):
                ops.append((f"v_fma_f32 v{base + r}, v{base + r}, {sC}, -v{vMC[T]}", 5))
            for r in range(nreg):
                ops.append((f"v_exp_f32 v{base + r}, v{base + r}", 8))
            for r in range(0, nreg, 2):
                if first and s2 == 0 and r == 0:
                    ops.append((f"v_add_f32 v{vL[T]}, v{base + r}, v{base + r + 1}", 4))
                else:
                    ops.append((f"v_add_f32 v{vL[T]}, v{vL[T]}, v{base + r}", 4))
                    ops.append((f"v_add_f32 v{vL[T]}, v{vL[T]}, v{base + r + 1}", 4))
                ops.append((f"v_cvt_pk_bf16_f32 v{pk + r // 2}, v{base + r}, v{base + r + 1}", 5))
            if T < 2:
                ops.append((f"ds_write_b128 v{vPw}, {vr(pk, 4)} offset:{pb + s2 * 2048 + T * 1024}", 8))
            else:
                ops.append((f"ds_write_b64 v{vP2w}, {vr(pk, 2)} offset:{pb}", 6))
        return ops

    P.label(L("L_main"))
    dq = []
    for n in range(min(G, len(GSEQ))):
        for op in dma_ops(n):
            emit_dma(op)
    P.I(f"s_cmp_lg_u32 {sMODE}, 0")
    P.I(f"s_cbranch_scc1 {L('L_skipq')}")
    P.I(f"v_lshlrev_b32 v{vTMP}, 2, v2")
    P.I(f"v_mov_b32 v{vTMP + 1}, 0xff800000")
    P.I(f"v_mov_b32 v{vTMP + 2}, 0")
    P.I(f"ds_write_b32 v{vTMP}, v{vTMP + 1} offset:{STAT}")
    P.I(f"ds_write_b32 v{vTMP}, v{vTMP + 1} offset:{STAT + 256}")
    P.I(f"ds_write_b32 v{vTMP}, v{vTMP + 2} offset:{STAT + 512}")
    P.I(f"ds_write_b32 v{vTMP}, v{vTMP + 2} offset:{STAT + 768}")
    for r in range(64):
        P.I(f"v_accvgpr_write_b32 a{aQ[2] + r}, 0")
    for s1 in range(4):
        P.I(f"v_subrev_u32 v{vTMP + 4 + s1}, {sRING}, v{vKr[s1]}")
    P.I(f"v_and_b32 v{vTMP + 8}, 7, v2")
    P.I(f"v_lshrrev_b32 v{vTMP + 9}, 1, v{vTMP + 8}")
    P.I(f"v_lshrrev_b32 v{vTMP + 10}, 5, v2")
    P.I(f"v_xor_b32 v{vTMP + 9}, v{vTMP + 9}, v{vTMP + 10}")
    P.I(f"v_lshlrev_b32 v{vTMP + 9}, 4, v{vTMP + 9}")
    P.I(f"v_lshl_add_u32 v{vTMP + 9}, v{vTMP + 8}, 7, v{vTMP + 9}")
    for s1 in range(4):
        P.I(f"v_xor_b32 v{vTMP + 12 + s1}, {32 * s1}, v{vTMP + 9}")
    P.wait_vm_tag('q')
    P.wait(lgkm=0)
    P.I("s_barrier")
    P.I("s_mov_b32 exec_lo, 0xff0000ff")
    P.I("s_mov_b32 exec_hi, 0xff0000ff")
    for s in range(16):
        P.I(f"ds_read_b128 {ar(aQ[2] + 4 * s, 4)}, v{vTMP + 12 + (s & 3)} offset:{(32 + (s >> 2)) * 1024}")
    P.I("s_mov_b64 exec, -1")
    for s in range(16):
        for T in range(2):
            P.I(f"ds_read_b128 {ar(aQ[T] + 4 * s, 4)}, v{vTMP + 4 + (s & 3)} offset:{(T * 16 + (s >> 2) * 4) * 1024}")
    P.wait(lgkm=0)
    P.label(L("L_skipq"))

    state = dict(rp=0, rq=[], cur=0, qk_done=0, pv_done=0, it=-1)

    def can_prefetch(st, tn):
        if st.t0 > tn + LA:
            return False
        if st.needbar and st.it != state['it']:
            return False
        if st.kind == 'qk' and st.idx - NK >= state['qk_done']:
            return False
        if st.kind == 'pv' and st.idx - NPV >= state['pv_done']:
            return False
        return True

    def refill(tn):
        while state['rp'] < len(steps) and can_prefetch(steps[state['rp']], tn):
            state['rq'] += steps[state['rp']].reads
            steps[state['rp']].issued_reads = True
            state['rp'] += 1

    def emit_read(r):
        text, tag, nv = r
        P.I(text, tag=tag, need_vm=nv)

    def force_reads(k):
        while state['rp'] <= k:
            state['rq'] += steps[state['rp']].reads
            state['rp'] += 1
        need = sum(len(steps[x].reads) for x in range(k + 1))
        while state['nread'] < need:
            emit_read(state['rq'].pop(0))
            state['nread'] += 1

    state['nread'] = 0

    def run_iter(it, sm, pre=None):
        state['it'] = it
        its = [k for k, st in enumerate(steps) if st.it == it]
        tstart = steps[its[0]].t0
        ttot = sum(c for k in its for _, c in steps[k].mf)
        nsm = len(sm)
        smcost = sum(c for _, c in sm)
        done_cost = 0
        for k in its:
            st = steps[k]
            force_reads(k)
            tn = st.t0
            for mi, (text, cyc) in enumerate(st.mf):
                P.I(text)
                tn += cyc
                if mi == len(st.mf) - 1:
                    if st.kind == 'qk':
                        state['qk_done'] = st.idx + 1
                    else:
                        state['pv_done'] = st.idx + 1
                    if st.free is not None and st.free + G < len(GSEQ):
                        dq.extend(dma_ops(st.free + G))
                budget = cyc - 8
                refill(tn)
                ndma = 0
                while budget > 0:
                    if state['rq']:
                        emit_read(state['rq'].pop(0))
                        state['nread'] += 1
                        budget -= 5
                        continue
                    if dq and ndma < 1:
                        op = dq.pop(0)
                        emit_dma(op)
                        if op[0] == 'dma':
                            ndma += 1
                            budget -= 8
                        else:
                            budget -= 4
                        continue
                    frac = min(1.0, (tn - tstart) / (cfg['smfrac'] * ttot))
                    if sm and done_cost < frac * smcost:
                        text2, c2 = sm.pop(0)
                        P.I(text2)
                        done_cost += c2
                        budget -= c2
                        continue
                    break
        while sm:
            text2, c2 = sm.pop(0)
            P.I(text2)

    run_iter(-1, [])
    S = SB[0]
    for T, nreg in ((0, 16), (1, 16), (2, 4)):
        b = S[f'T{T}']
        d = vTMP + T
        P.I(f"v_max3_f32 v{d}, v{b}, v{b + 1}, v{b + 2}")
        r = 3
        while r < nreg:
            if r + 1 < nreg:
                P.I(f"v_max3_f32 v{d}, v{d}, v{b + r}, v{b + r + 1}")
                r += 2
            else:
                P.I(f"v_max_f32 v{d}, v{d}, v{b + r}")
                r += 1
    P.I(f"ds_max_f32 v{vSt}, v{vTMP}")
    P.I(f"ds_max_f32 v{vSt}, v{vTMP + 1} offset:128")
    P.I(f"ds_max_f32 v{vSt2}, v{vTMP + 2}")
    P.wait(lgkm=0)
    P.I("s_barrier")
    P.I(f"ds_read_b32 v{vMC[0]}, v{vSt}")
    P.I(f"ds_read_b32 v{vMC[1]}, v{vSt} offset:128")
    P.I(f"ds_read_b32 v{vMC[2]}, v{vSt2}")
    P.I(f"v_mov_b32 v{vTMP + 4}, 0")
    P.I(f"v_lshlrev_b32 v{vTMP + 5}, 2, v2")
    P.I(f"s_lshl_b32 s34, {sWAVE}, 10")
    P.I(f"v_add_u32 v{vTMP + 5}, s34, v{vTMP + 5}")
    for pbuf in range(2):
        for s2 in range(2):
            P.I(f"ds_write_b32 v{vTMP + 5}, v{vTMP + 4} offset:{pbuf * PBUF + P2OFF + s2 * 512 + 256}")
    for T in range(3):
        P.I(f"v_mul_f32 v{vMC[T]}, {sC}, v{vMC[T]}")
    for it in range(0, 9):
        sm = softmax_ops(it) if it <= 7 else []
        if it == 8:
            P.I(f"ds_read_b32 v{vTMP}, v{vSt} offset:512")
            P.I(f"ds_read_b32 v{vTMP + 1}, v{vSt} offset:640")
            P.I(f"ds_read_b32 v{vTMP + 2}, v{vSt2} offset:512")
        run_iter(it, sm)
        while dq and it >= 7:
            emit_dma(dq.pop(0))
        if it == 7:
            P.I(f"ds_add_f32 v{vSt}, v{vL[0]} offset:512")
            P.I(f"ds_add_f32 v{vSt}, v{vL[1]} offset:640")
            P.I(f"ds_add_f32 v{vSt2}, v{vL[2]} offset:512")
        if it < 8:
            P.wait(lgkm=0)
            P.I("s_barrier")
    assert not dq
    P.I(f"v_max3_f32 v{vTMP + 3}, v{vTMP}, v{vTMP + 1}, v{vTMP + 2}")
    P.I(f"v_add_f32 v{vTMP + 4}, v{vTMP}, v{vTMP + 1}")
    P.I(f"v_add_f32 v{vTMP + 4}, v{vTMP + 4}, v{vTMP + 2}")
    P.I(f"v_cmp_gt_f32 vcc, 0x5f800000, v{vTMP + 4}")
    P.I(f"s_cmp_lg_u32 {sMODE}, 0")
    P.I(f"s_cbranch_scc1 {L('L_epi')}")
    P.I("s_cmp_eq_u64 vcc, -1")
    P.I(f"s_cbranch_scc0 {L('L_fallback')}")
    P.label(L("L_epi"))
    for T in range(3):
        P.I(f"v_rcp_f32 v{vTMP + T}, v{vTMP + T}")
    P.I(f"v_and_b32 v{vTMP + 4}, 31, v2")
    P.I(f"v_mul_u32_u24 v{vTMP + 4}, 144, v{vTMP + 4}")
    P.I(f"v_lshrrev_b32 v{vTMP + 5}, 5, v2")
    P.I(f"v_lshl_add_u32 v{vTMP + 4}, v{vTMP + 5}, 3, v{vTMP + 4}")
    P.I(f"v_add_u32 v{vTMP + 4}, {sRING}, v{vTMP + 4}")
    P.I(f"v_and_b32 v{vTMP + 5}, 7, v2")
    P.I(f"v_mul_u32_u24 v{vTMP + 5}, 144, v{vTMP + 5}")
    P.I(f"v_bfe_u32 v{vTMP + 6}, v2, 3, 1")
    P.I(f"v_lshl_add_u32 v{vTMP + 5}, v{vTMP + 6}, 5, v{vTMP + 5}")
    P.I(f"v_lshrrev_b32 v{vTMP + 6}, 4, v2")
    P.I(f"v_lshl_add_u32 v{vTMP + 5}, v{vTMP + 6}, 3, v{vTMP + 5}")
    P.I(f"v_add_u32 v{vTMP + 5}, {sRING}, v{vTMP + 5}")
    P.I(f"v_lshrrev_b32 v{vTMP + 6}, 3, v2")
    P.I(f"v_and_b32 v{vTMP + 7}, 7, v2")
    P.I(f"v_mul_u32_u24 v{vTMP + 8}, 144, v{vTMP + 6}")
    P.I(f"v_lshl_add_u32 v{vTMP + 8}, v{vTMP + 7}, 4, v{vTMP + 8}")
    P.I(f"v_add_u32 v{vTMP + 8}, {sRING}, v{vTMP + 8}")
    P.I(f"v_lshlrev_b32 v{vTMP + 9}, 9, v{vTMP + 6}")
    P.I(f"v_lshl_add_u32 v{vTMP + 9}, v{vTMP + 7}, 4, v{vTMP + 9}")
    P.I(f"s_lshl_b32 s34, {sWAVE}, 7")
    P.I(f"v_add_u32 v{vTMP + 9}, s34, v{vTMP + 9}")
    E = 64
    k = 0
    for T in range(2):
        for dt in range(2):
            for a in range(4):
                e = E + 8 * (k % 8)
                k += 1
                for r in range(4):
                    P.I(f"v_accvgpr_read_b32 v{e + r}, a{aO[(T, dt)] + 4 * a + r}")
                for r in range(4):
                    P.I(f"v_mul_f32 v{e + r}, v{e + r}, v{vTMP + T}")
                P.I(f"v_cvt_pk_bf16_f32 v{e + 4}, v{e}, v{e + 1}")
                P.I(f"v_cvt_pk_bf16_f32 v{e + 5}, v{e + 2}, v{e + 3}")
                P.I(f"ds_write_b64 v{vTMP + 4}, {vr(e + 4, 2)} offset:{T * 32 * 144 + 64 * dt + 16 * a}")
    for dt in range(2):
        e = vOs[dt]
        for r in range(4):
            P.I(f"v_mul_f32 v{e + r}, v{e + r}, v{vTMP + 2}")
        P.I(f"v_cvt_pk_bf16_f32 v{e}, v{e}, v{e + 1}")
        P.I(f"v_cvt_pk_bf16_f32 v{e + 1}, v{e + 2}, v{e + 3}")
        P.I(f"ds_write_b64 v{vTMP + 5}, {vr(e, 2)} offset:{64 * 144 + 64 * dt}")
    P.wait(lgkm=0)
    for kk in range(9):
        P.I(f"ds_read_b128 {vr(136 + 4 * kk, 4)}, v{vTMP + 8} offset:{kk * 8 * 144}")
    for kk in range(9):
        P.I(f"s_mov_b32 {sOFF}, {kk * 4096}")
        P.I(f"buffer_store_dwordx4 {vr(136 + 4 * kk, 4)}, v{vTMP + 9}, {sO}, {sOFF} offen")
    if cfg.get('stamps'):
        P.drain()
        P.I("s_branch L_stamp")
    P.I("s_endpgm")
    P.vm = []
    P.lgkm = []

    P.label(L("L_fallback"))
    P.nops(16)
    P.I("s_barrier")
    P.I(f"v_lshlrev_b32 v{vTMP}, 2, v2")
    P.I(f"v_mov_b32 v{vTMP + 2}, 0")
    P.I(f"ds_write_b32 v{vTMP}, v{vTMP + 2} offset:{STAT + 512}")
    P.I(f"ds_write_b32 v{vTMP}, v{vTMP + 2} offset:{STAT + 768}")
    for T in range(3):
        P.I(f"v_mov_b32 v{vTMP + 4 + T}, 0xff800000")
    P.I("s_mov_b32 s35, 0")
    P.drain()
    P.label(L("L_fb_loop"))
    for cg in range(4):
        P.I(f"s_add_u32 m0, {sRING}, {cg * 4096}")
        P.I(f"s_add_u32 {sOFF}, s35, {cg * 128}")
        for b in range(4):
            P.I(f"buffer_load_dwordx4 v{vKd[b]}, {sK}, {sOFF} offen offset:{b * 1024} lds")
    P.drain()
    S = SB[0]
    for s in range(16):
        kf = KF0 + 4 * (s % NK)
        P.I(f"ds_read_b128 {vr(kf, 4)}, v{vKr[s & 3]} offset:{(s >> 2) * 4096}")
        c = lambda T, w: '0' if s == 0 else vr(S[T], w)
        P.I(f"v_mfma_f32_32x32x16_bf16 {vr(S['T0'], 16)}, {vr(kf, 4)}, {ar(aQ[0] + 4 * s, 4)}, {c('T0', 16)}")
        P.I(f"v_mfma_f32_32x32x16_bf16 {vr(S['T1'], 16)}, {vr(kf, 4)}, {ar(aQ[1] + 4 * s, 4)}, {c('T1', 16)}")
        P.I(f"v_mfma_f32_16x16x32_bf16 {vr(S['T2'], 4)}, {vr(kf, 4)}, {ar(aQ[2] + 4 * s, 4)}, {c('T2', 4)}")
    for T, nreg in ((0, 16), (1, 16), (2, 4)):
        b = S[f'T{T}']
        d = vTMP + 4 + T
        for r in range(0, nreg, 2):
            P.I(f"v_max3_f32 v{d}, v{d}, v{b + r}, v{b + r + 1}")
    P.nops(8)
    P.I("s_add_u32 s35, s35, 4096")
    P.I("s_cmp_lt_u32 s35, 32768")
    P.I(f"s_cbranch_scc1 {L('L_fb_loop')}")
    P.I(f"ds_max_f32 v{vSt}, v{vTMP + 4}")
    P.I(f"ds_max_f32 v{vSt}, v{vTMP + 5} offset:128")
    P.I(f"ds_max_f32 v{vSt2}, v{vTMP + 6}")
    P.drain()
    P.I("s_barrier")
    P.I(f"s_mov_b32 {sMODE}, 1")
    P.I(f"s_branch {L('L_main')}")


def gen(fname, cfg):
    GL, GF = cfg['GL'], cfg['GF']
    assert RING0 + (GL + 3 * GF) * 4096 <= LDS_TOTAL
    assert GL <= 16 and GF >= 4
    P = Prog()
    P.raw(f"; @launch grid=(256,1,1) block=(256,1,1) lds={LDS_TOTAL}")
    P.raw('.amdgcn_target "amdgcn-amd-amdhsa--gfx950"')
    P.raw(".text")
    P.raw(f".globl {KNAME}")
    P.raw(".p2align 8")
    P.raw(f".type {KNAME},@function")
    P.raw(f"{KNAME}:")
    P.I("s_cmp_ge_u32 s2, 256")
    P.I("s_cbranch_scc1 L_done")
    P.I("s_load_dwordx8 s[4:11], s[0:1], 0")
    if cfg.get('stamps'):
        P.I("s_memrealtime s[40:41]")
        P.I("s_load_dwordx2 s[44:45], s[0:1], 40")
    P.I("v_lshrrev_b32 v1, 6, v0")
    P.I("v_and_b32 v2, 63, v0")
    P.I(f"v_readfirstlane_b32 {sWAVE}, v1")
    P.I("s_and_b32 s34, s2, 7")
    P.I("s_lshr_b32 s35, s2, 3")
    P.I("s_lshr_b32 s36, s35, 2")
    P.I(f"s_and_b32 {sJ}, s35, 3")
    P.I("s_lshl_b32 s34, s34, 3")
    P.I("s_add_u32 s36, s36, s34")
    P.I("s_mul_i32 s37, s36, 288")
    P.I(f"s_mul_i32 s38, {sJ}, 72")
    P.I("s_add_u32 s37, s37, s38")
    P.I("s_lshl_b32 s37, s37, 9")
    P.I("s_lshl_b32 s36, s36, 19")
    P.I("v_lshrrev_b32 v3, 3, v2")
    P.I("v_and_b32 v4, 7, v2")
    P.I("v_lshrrev_b32 v5, 4, v2")
    P.I("v_xor_b32 v5, v5, v4")
    P.I("v_lshlrev_b32 v5, 4, v5")
    P.I("v_lshl_add_u32 v5, v3, 9, v5")
    P.I("v_xor_b32 v6, 64, v5")
    P.wait_raw("lgkmcnt(0)")
    P.I("s_add_u32 s20, s4, s37")
    P.I("s_addc_u32 s21, s5, 0")
    P.I("s_and_b32 s21, s21, 0xffff")
    P.I("s_mov_b32 s22, 36864")
    P.I("s_mov_b32 s23, 0x20000")
    P.I(f"s_mul_i32 s38, {sWAVE}, 9")
    for x in range(9):
        P.I(f"s_add_u32 s39, s38, {x}")
        P.I("s_lshl_b32 m0, s39, 10")
        P.I("s_lshr_b32 s46, s39, 4")
        P.I("s_lshl_b32 s46, s46, 14")
        P.I("s_and_b32 s47, s39, 3")
        P.I("s_bfe_u32 s48, s39, 0x20002")
        P.I("s_cmp_ge_u32 s39, 32")
        P.I("s_cselect_b32 s48, s47, s48")
        P.I("s_cselect_b32 s47, 0, s47")
        P.I("s_lshl_b32 s49, s47, 12")
        P.I("s_add_u32 s46, s46, s49")
        P.I("s_lshl_b32 s48, s48, 7")
        P.I("s_add_u32 s46, s46, s48")
        P.I("s_bitcmp1_b32 s47, 0")
        P.I("s_cselect_b64 vcc, -1, 0")
        P.I("v_cndmask_b32 v7, v5, v6, vcc")
        P.I(f"buffer_load_dwordx4 v7, {sQ}, s46 offen lds", tag='q')
    P.I("s_add_u32 s12, s6, s36")
    P.I("s_addc_u32 s13, s7, 0")
    P.I("s_and_b32 s13, s13, 0xffff")
    P.I("s_mov_b32 s14, 524288")
    P.I("s_mov_b32 s15, 0x20000")
    P.I("s_add_u32 s16, s8, s36")
    P.I("s_addc_u32 s17, s9, 0")
    P.I("s_and_b32 s17, s17, 0xffff")
    P.I("s_mov_b32 s18, 524288")
    P.I("s_mov_b32 s19, 0x20000")
    P.I("s_add_u32 s24, s10, s37")
    P.I("s_addc_u32 s25, s11, 0")
    P.I("s_and_b32 s25, s25, 0xffff")
    P.I("s_mov_b32 s26, 36864")
    P.I("s_mov_b32 s27, 0x20000")
    P.I(f"s_mov_b32 {sC}, {f32hex(CSCALE)}")
    P.I(f"s_mov_b32 {sMODE}, 0")
    P.I(f"s_mul_i32 {sRING}, {sWAVE}, {GF * 4096}")
    P.I(f"s_add_u32 s34, {sRING}, {(GL - GF) * 4096}")
    P.I(f"s_cmp_gt_u32 {sWAVE}, {sJ}")
    P.I(f"s_cselect_b32 {sRING}, s34, {sRING}")
    P.I(f"s_add_u32 {sRING}, {sRING}, {RING0}")
    P.I(f"s_lshl_b32 s34, {sWAVE}, 17")
    P.I(f"v_add_u32 v{vKd[0]}, s34, v5")
    P.I(f"v_add_u32 v{vKd[1]}, s34, v6")
    P.I(f"v_add_u32 v{vKd[1]}, {31744}, v{vKd[1]}")
    P.I(f"v_add_u32 v{vKd[2]}, {2 * 31744}, v{vKd[0]}")
    P.I(f"v_add_u32 v{vKd[3]}, {2 * 31744}, v{vKd[1]}")
    P.I("v_bfe_u32 v7, v2, 4, 1")
    P.I("v_lshlrev_b32 v7, 2, v7")
    P.I("v_xor_b32 v7, v7, v4")
    P.I("v_lshlrev_b32 v7, 4, v7")
    P.I("v_lshl_add_u32 v7, v3, 9, v7")
    P.I(f"s_lshl_b32 s34, {sWAVE}, 7")
    P.I(f"v_add_u32 v{vVd[0]}, s34, v7")
    for b in range(1, 4):
        P.I(f"v_add_u32 v{vVd[b]}, {31744}, v{vVd[b - 1]}")
    P.I("v_and_b32 v3, 31, v2")
    P.I("v_lshrrev_b32 v4, 5, v2")
    P.I("v_bfe_u32 v5, v2, 1, 3")
    P.I("v_xor_b32 v5, v5, v4")
    P.I("v_lshlrev_b32 v5, 4, v5")
    P.I("v_lshl_add_u32 v5, v3, 7, v5")
    for s1 in range(4):
        P.I(f"v_xor_b32 v6, {32 * s1}, v5")
        P.I(f"v_add_u32 v{vKr[s1]}, {sRING}, v6")
    P.I("v_bfe_u32 v5, v2, 2, 2")
    P.I("v_lshl_add_u32 v5, v4, 2, v5")
    P.I("v_bfe_u32 v6, v2, 4, 1")
    P.I("v_bfe_u32 v7, v2, 1, 1")
    P.I("v_lshl_add_u32 v6, v6, 1, v7")
    P.I("v_bfe_u32 v7, v2, 3, 1")
    P.I("v_lshl_add_u32 v6, v7, 2, v6")
    P.I("v_lshlrev_b32 v6, 4, v6")
    P.I("v_lshl_add_u32 v6, v5, 7, v6")
    P.I("v_and_b32 v7, 1, v2")
    P.I("v_lshl_add_u32 v6, v7, 3, v6")
    P.I(f"v_add_u32 v{vVr[0]}, {sRING}, v6")
    P.I("v_xor_b32 v6, 64, v6")
    P.I(f"v_add_u32 v{vVr[1]}, {sRING}, v6")
    P.I(f"v_lshlrev_b32 v{vPr}, 4, v2")
    P.I(f"s_lshl_b32 s34, {sWAVE}, 12")
    P.I(f"v_add_u32 v{vPw}, s34, v{vPr}")
    P.I("v_and_b32 v5, 7, v2")
    P.I("v_lshlrev_b32 v5, 5, v5")
    P.I("v_bfe_u32 v6, v2, 3, 1")
    P.I("v_lshl_add_u32 v7, v6, 9, v5")
    P.I("v_bfe_u32 v8, v2, 4, 1")
    P.I("v_lshl_add_u32 v7, v8, 4, v7")
    P.I("v_lshl_add_u32 v7, v4, 3, v7")
    P.I(f"s_lshl_b32 s34, {sWAVE}, 10")
    P.I(f"s_add_u32 s34, s34, {P2OFF}")
    P.I(f"v_add_u32 v{vP2w}, s34, v7")
    P.I("v_xor_b32 v6, v6, v8")
    P.I("v_lshl_add_u32 v7, v6, 8, v5")
    P.I("v_lshl_add_u32 v7, v4, 4, v7")
    P.I(f"v_add_u32 v{vP2r}, {P2OFF}, v7")
    P.I("v_lshlrev_b32 v5, 2, v3")
    P.I(f"v_add_u32 v{vSt}, {STAT}, v5")
    P.I("v_and_b32 v5, 7, v2")
    P.I("v_lshlrev_b32 v5, 2, v5")
    P.I(f"v_add_u32 v{vSt2}, {STAT + 256}, v5")
    if GL != GF:
        P.I(f"s_cmp_eq_u32 {sWAVE}, {sJ}")
        P.I("s_cbranch_scc1 L_main_lead")
    vm0, lg0 = list(P.vm), list(P.lgkm)
    gen_role(P, "fol", GF, cfg)
    if GL != GF:
        P.vm, P.lgkm = list(vm0), list(lg0)
        gen_role(P, "lead", GL, cfg)
    if cfg.get('stamps'):
        P.label("L_stamp")
        P.I("s_barrier")
        P.I("s_memrealtime s[42:43]")
        P.wait_raw("lgkmcnt(0)")
        P.I(f"s_cmp_lg_u32 {sWAVE}, 0")
        P.I("s_cbranch_scc1 L_done")
        P.I("v_mov_b32 v20, s40")
        P.I("v_mov_b32 v21, s41")
        P.I("v_mov_b32 v22, s42")
        P.I("v_mov_b32 v23, s43")
        P.I("s_lshl_b32 s34, s2, 4")
        P.I("v_mov_b32 v24, s34")
        P.I("v_cmp_eq_u32 vcc, 0, v2")
        P.I("s_and_saveexec_b64 s[36:37], vcc")
        P.I("global_store_dwordx4 v24, v[20:23], s[44:45]")
    P.label("L_done")
    P.I("s_endpgm")
    P.raw('.section .rodata,"a"')
    P.raw(".p2align 6")
    P.raw(f".amdhsa_kernel {KNAME}")
    P.raw("  .amdhsa_next_free_vgpr 512")
    P.raw("  .amdhsa_next_free_sgpr 102")
    P.raw("  .amdhsa_accum_offset 256")
    P.raw("  .amdhsa_group_segment_fixed_size 0")
    P.raw("  .amdhsa_kernarg_size 48")
    P.raw("  .amdhsa_user_sgpr_count 2")
    P.raw("  .amdhsa_user_sgpr_kernarg_segment_ptr 1")
    P.raw("  .amdhsa_system_sgpr_workgroup_id_x 1")
    P.raw(".end_amdhsa_kernel")
    open(fname, "w").write(P.text())
    return P


if __name__ == "__main__":
    ap = argparse.ArgumentParser()
    ap.add_argument("out")
    ap.add_argument("--GL", type=int, default=7)
    ap.add_argument("--GF", type=int, default=7)
    ap.add_argument("--la", type=int, default=300)
    ap.add_argument("--smfrac", type=float, default=0.9)
    ap.add_argument("--stamps", action="store_true")
    a = ap.parse_args()
    cfg = dict(GL=a.GL, GF=a.GF, lookahead=a.la, smfrac=a.smfrac, stamps=a.stamps)
    P = gen(a.out, cfg)
    print(a.out, "instrs", P.ninstr, P.stats)
```
